```python
import torch

def _softmax(x, axis=-1):
    return torch.softmax(x, dim=axis)
def _gelu(x):
    return torch.nn.functional.gelu(x, approximate="tanh")
def _silu(x):
    return torch.nn.functional.silu(x)
def _sigmoid(x):
    return torch.sigmoid(x)
def _layernorm(x, axis=-1, eps=1e-5):
    m = x.mean(dim=axis, keepdim=True)
    v = x.var(dim=axis, keepdim=True, unbiased=False)
    return (x - m) / torch.sqrt(v + eps)
def _scatter_add(tgt, idx, src, axis=0):
    return tgt.clone().index_add_(axis, idx, src)
def _segment_sum(src, seg, n):
    out = torch.zeros((n,) + src.shape[1:], dtype=src.dtype)
    return out.index_add_(0, seg, src)
def _pad(x, pw):
    flat = tuple(v for pair in reversed(pw) for v in pair)
    return torch.nn.functional.pad(x, flat)

kernel_name = 'parallel_sum__ssm_conv_s5__glu_gated_swiglu__prompt'

def setup_inputs():

    _w = (lambda a: (lambda t: t.to(torch.bfloat16) if t.is_floating_point() else t)(torch.as_tensor(a)))
    def _A_setup():
        B, S, D = 1, 2048, 576
        P = D
        Lambda_re = -0.5 * (lambda _x: torch.exp(torch.as_tensor(_x)))((lambda *s: torch.randn(*s, dtype=torch.bfloat16) * 0.2)(P))
        Lambda_im = (lambda *s: torch.randn(*s, dtype=torch.bfloat16) * 0.8)(P) * 1.0
        B_re = (lambda *s: torch.randn(*s, dtype=torch.bfloat16) * 0.2)(P, D) * (D ** -0.5)
        B_im = (lambda *s: torch.randn(*s, dtype=torch.bfloat16) * 0.2)(P, D) * (D ** -0.5)
        C_re = (lambda *s: torch.randn(*s, dtype=torch.bfloat16) * 0.2)(D, P) * (P ** -0.5)
        C_im = (lambda *s: torch.randn(*s, dtype=torch.bfloat16) * 0.2)(D, P) * (P ** -0.5)
        log_dt = (lambda *s: torch.randn(*s, dtype=torch.bfloat16) * 0.2)(P) * 0.3 - 2.0
        Dskip = (lambda *s: torch.randn(*s, dtype=torch.bfloat16) * 0.05)(D)
        return {
            "x": _w((lambda *s: torch.randn(*s, dtype=torch.bfloat16) * 0.05)(B, S, D)),
            "Lambda_re": _w(Lambda_re),
            "Lambda_im": _w(Lambda_im),
            "B_re": _w(B_re),
            "B_im": _w(B_im),
            "C_re": _w(C_re),
            "C_im": _w(C_im),
            "log_dt": _w(log_dt),
            "Dskip": _w(Dskip),
        }
    _A_in = _A_setup()

    def _B_setup():
        B, S, D, F = 1, 2048, 576, 4608
        return {
            "x": _w((lambda *s: torch.randn(*s, dtype=torch.bfloat16) * 0.05)(B, S, D)),
            "w1": _w((lambda *s: torch.randn(*s, dtype=torch.bfloat16) * 0.4)(D, F) * (2.0 / D) ** 0.5),
            "w3": _w((lambda *s: torch.randn(*s, dtype=torch.bfloat16) * 0.4)(D, F) * (2.0 / D) ** 0.5),
            "w2": _w((lambda *s: torch.randn(*s, dtype=torch.bfloat16) * 0.4)(F, D) * (2.0 / F) ** 0.5),
        }
    _B_in = _B_setup()

    return {
        "A_x": _A_in["x"],
        "A_Lambda_re": _A_in["Lambda_re"],
        "A_Lambda_im": _A_in["Lambda_im"],
        "A_B_re": _A_in["B_re"],
        "A_B_im": _A_in["B_im"],
        "A_C_re": _A_in["C_re"],
        "A_C_im": _A_in["C_im"],
        "A_log_dt": _A_in["log_dt"],
        "A_Dskip": _A_in["Dskip"],
        "B_x": _B_in["x"],
        "B_w1": _B_in["w1"],
        "B_w3": _B_in["w3"],
        "B_w2": _B_in["w2"],
    }

def reference(A_x, A_Lambda_re, A_Lambda_im, A_B_re, A_B_im, A_C_re, A_C_im, A_log_dt, A_Dskip, B_x, B_w1, B_w3, B_w2):
    def _A_ref(x, Lambda_re, Lambda_im, B_re, B_im, C_re, C_im, log_dt, Dskip):
        Bsz, L, H = x.shape
        Lam = Lambda_re + 1j * Lambda_im
        Bmat = B_re + 1j * B_im
        Cmat = C_re + 1j * C_im
        dt = torch.exp(log_dt)
        Lam_bar = torch.exp(dt * Lam)
        B_bar = ((Lam_bar - 1.0) / Lam)[:, None] * Bmat
        Bu = torch.einsum("bld,pd->blp", x + 0j, B_bar)
        h = torch.zeros_like(Bu[:, 0, :])
        hs = []
        for t in range(L):
            h = Lam_bar[None, :] * h + Bu[:, t, :]
            hs.append(h)
        hseq = torch.stack(hs, 1)
        y = 2.0 * torch.einsum("blp,dp->bld", hseq, Cmat).real + x * Dskip[None, None, :]
        return y

    def _B_ref(x, w1, w3, w2):
        gate = torch.einsum("bsd,df->bsf", x, w1)
        up = torch.einsum("bsd,df->bsf", x, w3)
        h = _silu(gate) * up
        out = torch.einsum("bsf,fd->bsd", h, w2)
        return out

    x = A_x
    xn = _layernorm(x, axis=-1)
    return x + _A_ref(xn, A_Lambda_re, A_Lambda_im, A_B_re, A_B_im, A_C_re, A_C_im, A_log_dt, A_Dskip) + _B_ref(xn, B_w1, B_w3, B_w2)
```

```python
NAME = "parallel_sum__ssm_conv_s5__glu_gated_swiglu__prompt"

class Asm:
    def __init__(self):
        self.L = []
    def __call__(self, s):
        for line in s.strip("\n").split("\n"):
            self.L.append("    " + line.strip() if not line.strip().endswith(":") else line.strip())
    def label(self, n):
        self.L.append(n + ":")
    def c(self, s):
        self.L.append("    ; " + s)
    def text(self):
        return "\n".join(self.L) + "\n"

HEADER = open("cdna_kernels/%s.s.ref" % NAME).read().split("; Override launch")[0]

def kernel_begin(a, label):
    a.L.append(".globl %s" % label)
    a.L.append(".p2align 8")
    a.L.append(".type %s,@function" % label)
    a.L.append("%s:" % label)

def descriptor(label, vgpr, sgpr, accum):
    return """.p2align 6
.amdhsa_kernel %s
  .amdhsa_next_free_vgpr %d
  .amdhsa_next_free_sgpr %d
  .amdhsa_accum_offset %d
  .amdhsa_group_segment_fixed_size 0
  .amdhsa_kernarg_size 128
  .amdhsa_user_sgpr_count 2
  .amdhsa_user_sgpr_kernarg_segment_ptr 1
  .amdhsa_system_sgpr_workgroup_id_x 1
  .amdhsa_float_denorm_mode_32 3
.end_amdhsa_kernel
""" % (label, vgpr, sgpr, accum)

def build_file(launches, bodies, descs):
    s = HEADER
    for (label, g, b, lds) in launches:
        s += "; @launch kernel=%s grid=(%d,1,1) block=(%d,1,1) lds=%d\n" % (label, g, b, lds)
    s += '.amdgcn_target "amdgcn-amd-amdhsa--gfx950"\n.text\n'
    s += bodies
    s += '.section .rodata,"a"\n'
    for d in descs:
        s += d
    return s
```

```python
from asmlib import *
def gen(name, pattern, unroll=1, iters=14, bar_every=0, seg=0):
    a = Asm()
    K = "mb_kernel"
    kernel_begin(a, K)
    a("""
    s_cmp_ge_u32 s2, 256
    s_cbranch_scc1 L_end
    s_load_dwordx2 s[4:5], s[0:1], 80
    s_load_dwordx2 s[6:7], s[0:1], 120
    s_load_dwordx2 s[40:41], s[0:1], 0
    s_waitcnt lgkmcnt(0)
    s_mov_b32 s8, s4
    s_mov_b32 s9, s5
    s_mov_b32 s10, 5308416
    s_mov_b32 s11, 0x20000
    s_mov_b32 s12, s6
    s_mov_b32 s13, s7
    s_mov_b32 s14, 0x100000
    s_mov_b32 s15, 0x20000
    s_mov_b32 s42, 2359296
    s_mov_b32 s43, 0x20000
    v_and_b32 v1, 63, v0
    v_lshrrev_b32 v2, 6, v0
    s_nop 0
    v_readfirstlane_b32 s16, v2
    s_and_b32 s17, s2, 15
    """)
    if seg == 0:
        a("""
        v_lshrrev_b32 v3, 3, v1
        s_lshl_b32 s18, s16, 3
        v_add_u32 v3, s18, v3
        v_and_b32 v4, 7, v1
        """)
    else:
        a("""
        v_lshrrev_b32 v3, 2, v1
        s_lshl_b32 s18, s16, 4
        v_add_u32 v3, s18, v3
        v_and_b32 v4, 3, v1
        """)
    a("""
    s_mov_b32 s19, 9216
    v_mul_lo_u32 v3, v3, s19
    v_lshlrev_b32 v4, 4, v4
    v_add_u32 v3, v3, v4
    s_mul_i32 s20, s17, 512
    v_add_u32 v3, s20, v3
    v_lshlrev_b32 v5, 3, v1
    s_lshl_b32 s21, s16, 10
    s_mov_b32 s22, 0
    s_mov_b32 s23, 0
    v_lshlrev_b32 v6, 4, v0
    s_lshl_b32 s24, s2, 13
    """)
    for i in range(0, 256, 4):
        a("buffer_load_dwordx4 a[%d:%d], v6, s[40:43], s24 offen" % (i, i + 3))
        a("s_add_u32 s24, s24, 4096")
        if i % 64 == 60: a("s_waitcnt vmcnt(0)")
    for i in range(8, 40, 4):
        a("buffer_load_dwordx4 v[%d:%d], v6, s[40:43], s24 offen" % (i, i + 3))
    a("s_mov_b32 s25, 0")
    for i in range(16):
        a("s_add_u32 m0, s21, %d" % (i * 4096))
        a("s_add_u32 s25, s25, %d" % (32 * 9216))
        a("buffer_load_dwordx4 v3, s[8:11], s25 offen lds")
    a("s_waitcnt vmcnt(0)")
    for i in range(40, 256):
        a("v_mov_b32 v%d, 0x3c123c45" % i)
    for i in range(18):
        a("s_mov_b32 s%d, %d" % (50 + i, i * 32 * 9216))
    a("s_barrier")
    a("s_memtime s[24:25]\ns_memrealtime s[26:27]\ns_waitcnt lgkmcnt(0)")
    a("s_mov_b32 s28, %d" % (iters // unroll))
    a.label("L_loop")
    for u in range(unroll):
        for n in range(144):
            ks = n // 8
            fb = 8 + (ks % 2) * 16 + ((n % 8) // 4) * 4
            acc = 40 + (n % 8) * 4
            xb = ((ks * 4 + n % 4) * 4) % 256
            a("v_mfma_f32_16x16x32_bf16 v[%d:%d], v[%d:%d], a[%d:%d], v[%d:%d]" % (acc, acc + 3, fb, fb + 3, xb, xb + 3, acc, acc + 3))
            for f in pattern(n): a(f)
            if bar_every and n % bar_every == 1:
                a("s_waitcnt vmcnt(8)")
                a("s_barrier")
        a("v_add_u32 v3, 128, v3\nv_subrev_u32 v3, 128, v3" if u % 2 else "s_nop 0\ns_nop 0")
    a("""
    s_sub_u32 s28, s28, 1
    s_cmp_lg_u32 s28, 0
    s_cbranch_scc1 L_loop
    s_waitcnt vmcnt(0) lgkmcnt(0)
    s_memtime s[30:31]
    s_memrealtime s[32:33]
    s_waitcnt lgkmcnt(0)
    s_sub_u32 s30, s30, s24
    s_sub_u32 s32, s32, s26
    v_mov_b32 v10, s30
    v_mov_b32 v11, s32
    s_mul_i32 s34, s2, 4
    s_add_u32 s34, s34, s16
    s_lshl_b32 s34, s34, 3
    v_mov_b32 v12, s34
    v_cmp_eq_u32 vcc, 0, v1
    s_and_saveexec_b64 s[36:37], vcc
    buffer_store_dwordx2 v[10:11], v12, s[12:15], 0 offen
    s_waitcnt vmcnt(0)
    L_end:
    s_endpgm
    """)
    d = descriptor(K, 512, 96, 256)
    open("dev/%s.s" % name, "w").write(build_file([(K, 256, 256, 163840)], a.text(), [d]))

def tr(n):
    ks = n // 8
    t = (n % 8) // 2
    fbn = 8 + ((ks + 1) % 2) * 16 + t * 2
    return "ds_read_b64_tr_b16 v[%d:%d], v5 offset:%d" % (fbn, fbn + 1, (ks * 2048 + t * 512) % 65536)
def valu(i, trans):
    r = 100 + i % 32
    return ("v_exp_f32 v%d, v%d" % (r, r + 32)) if trans else ("v_mul_f32 v%d, v%d, v%d" % (r, r + 32, r + 33))
def dma(i):
    return ["s_add_u32 m0, s21, %d" % (65536 + (i % 16) * 4096), "buffer_load_dwordx4 v3, s[8:11], s%d offen lds" % (50 + i % 18)]

def p_real(n, silu=True, dm=True):
    j = n % 8
    f = []
    if j % 2 == 0 and j < 8: f.append(tr(n))
    if j == 7: f.append("s_waitcnt lgkmcnt(0)")
    if dm:
        if j == 0: f.append(dma(n // 8)[0])
        if j == 2: f.append(dma(n // 8)[1])
    if silu:
        if j == 1: f.append(valu(n, True))
        if j == 3: f += [valu(n, False), valu(n + 1, False)]
        if j == 5: f.append(valu(n, True))
        if j == 7: f.insert(0, valu(n, False))
    return f
def p_real2(n):
    j = n % 8
    f = []
    if j < 4: f.append(tr((n // 8) * 8 + j * 2))
    if j == 7: f.append("s_waitcnt lgkmcnt(0)")
    if j == 4: f.append(dma(n // 8)[0])
    if j == 5: f.append(dma(n // 8)[1])
    if j == 0: f.append(valu(n, True))
    if j == 1: f += [valu(n, False)]
    if j == 2: f.append(valu(n, True))
    if j == 3: f.append(valu(n, False))
    if j == 6: f.append(valu(n, False))
    return f
gen("mb5_none", lambda n: [])
gen("mb5_v1", lambda n: [valu(n, False)])
gen("mb5_v2", lambda n: [valu(2 * n, False), valu(2 * n + 1, False)])
gen("mb5_t1", lambda n: [valu(n, True)])
gen("mb5_s1v2", lambda n: ["s_nop 0", valu(2 * n, False), valu(2 * n + 1, False)])
gen("mb5_s3", lambda n: ["s_nop 0"] * 3)
gen("mb5_real", p_real)
gen("mb5_real2", p_real2)
gen("mb5_real_bar48", p_real, bar_every=48)
gen("mb5_real_bar48_u14", p_real, bar_every=48, unroll=14)
gen("mb5_real_seg64", p_real, bar_every=48, seg=1)
gen("mb5_nodma", lambda n: p_real(n, True, False))
```

```python
from mb5 import *
def mk(trr=True, silu=True, dm=1, lag=False):
    def p(n):
        j = n % 8
        f = []
        if trr and j < 4: f.append(tr((n // 8) * 8 + j * 2))
        if trr and j == 7: f.append("s_waitcnt lgkmcnt(0)")
        if dm and (n // 8) % dm == 0:
            if j == 4: f.append(dma(n // 8)[0])
            if j == 5: f.append(dma(n // 8)[1])
        if silu:
            if j == 0: f.append(valu(n, True))
            if j == 1: f += [valu(n, False)]
            if j == 2: f.append(valu(n, True))
            if j == 3: f.append(valu(n, False))
            if j == 6: f.append(valu(n, False))
        return f
    return p
gen("mb6_a", mk(False, False, 0))
gen("mb6_b", mk(True, False, 0))
gen("mb6_c", mk(True, True, 0))
gen("mb6_d", mk(True, True, 1))
gen("mb6_e", mk(True, True, 2))
gen("mb6_f", mk(True, True, 1), bar_every=48)
gen("mb6_g", mk(False, False, 1))
```
